```python
import torch

def _softmax(x, axis=-1):
    return torch.softmax(x, dim=axis)
def _gelu(x):
    return torch.nn.functional.gelu(x, approximate="tanh")
def _silu(x):
    return torch.nn.functional.silu(x)
def _sigmoid(x):
    return torch.sigmoid(x)
def _layernorm(x, axis=-1, eps=1e-5):
    m = x.mean(dim=axis, keepdim=True)
    v = x.var(dim=axis, keepdim=True, unbiased=False)
    return (x - m) / torch.sqrt(v + eps)
def _scatter_add(tgt, idx, src, axis=0):
    return tgt.clone().index_add_(axis, idx, src)
def _segment_sum(src, seg, n):
    out = torch.zeros((n,) + src.shape[1:], dtype=src.dtype)
    return out.index_add_(0, seg, src)
def _pad(x, pw):
    flat = tuple(v for pair in reversed(pw) for v in pair)
    return torch.nn.functional.pad(x, flat)

kernel_name = 'parallel_sum__softmax_full_mha__glu_gated_glu__prompt'

def setup_inputs():

    _w = (lambda a: (lambda t: t.to(torch.bfloat16) if t.is_floating_point() else t)(torch.as_tensor(a)))
    def _A_setup():
        B, S, D = 1, 2048, 576
        return {
            "x": _w((lambda *s: torch.randn(*s, dtype=torch.bfloat16) * 0.05)(B, S, D)),
            "wqkv": _w((lambda *s: torch.randn(*s, dtype=torch.bfloat16) * 0.2)(D, 3 * D)),
            "wo": _w((lambda *s: torch.randn(*s, dtype=torch.bfloat16) * 0.1)(D, D)),
        }
    _A_in = _A_setup()

    def _B_setup():
        B, S, D, F = 1, 2048, 576, 4608
        return {
            "x": _w((lambda *s: torch.randn(*s, dtype=torch.bfloat16) * 0.05)(B, S, D)),
            "w_gate": _w((lambda *s: torch.randn(*s, dtype=torch.bfloat16) * 0.8)(D, F)),
            "w_up": _w((lambda *s: torch.randn(*s, dtype=torch.bfloat16) * 0.1)(D, F)),
            "w_down": _w((lambda *s: torch.randn(*s, dtype=torch.bfloat16) * 0.1)(F, D)),
        }
    _B_in = _B_setup()

    return {
        "A_x": _A_in["x"],
        "A_wqkv": _A_in["wqkv"],
        "A_wo": _A_in["wo"],
        "B_x": _B_in["x"],
        "B_w_gate": _B_in["w_gate"],
        "B_w_up": _B_in["w_up"],
        "B_w_down": _B_in["w_down"],
    }

def reference(A_x, A_wqkv, A_wo, B_x, B_w_gate, B_w_up, B_w_down):
    def _A_ref(x, wqkv, wo):
        B, S, D = x.shape
        H = 32; Dh = D // H
        qkv = (lambda x, *d: x.permute(*d))((x @ wqkv).reshape(B, S, 3, H, Dh), 2, 0, 3, 1, 4)
        q, k, v = qkv[0], qkv[1], qkv[2]
        scale = Dh ** -0.5
        scores = torch.einsum("bhqd,bhkd->bhqk", q, k) * scale
        p = _softmax(scores, axis=-1)
        o = torch.einsum("bhqk,bhkd->bhqd", p, v)
        return (lambda x, *d: x.permute(*d))(o, 0, 2, 1, 3).reshape(B, S, D) @ wo

    def _B_ref(x, w_gate, w_up, w_down):
        g = torch.einsum("bsd,df->bsf", x, w_gate)
        u = torch.einsum("bsd,df->bsf", x, w_up)
        h = _sigmoid(g) * u
        return torch.einsum("bsf,fd->bsd", h, w_down)

    x = A_x
    xn = _layernorm(x, axis=-1)
    return x + _A_ref(xn, A_wqkv, A_wo) + _B_ref(xn, B_w_gate, B_w_up, B_w_down)
```

```python
import re, sys

TRANS = ("v_exp_f32", "v_rcp_f32", "v_rsq_f32", "v_log_f32", "v_sqrt_f32")
def regs(tok):
    tok = tok.strip().lstrip('-')
    if tok.startswith("abs("): tok = tok[4:-1]
    if tok.startswith("|"): tok = tok.strip("|")
    m = re.fullmatch(r"([vsa])(\d+)", tok)
    if m: return {(m.group(1), int(m.group(2)))}
    m = re.fullmatch(r"([vsa])\[(\d+):(\d+)\]", tok)
    if m: return {(m.group(1), i) for i in range(int(m.group(2)), int(m.group(3)) + 1)}
    if tok == "vcc": return {("vcc", 0)}
    if tok == "exec": return {("exec", 0)}
    if tok == "m0": return {("m0", 0)}
    return set()

class I:
    def __init__(self, line, no):
        self.line = line; self.no = no
        body = line.split(";")[0].strip()
        p = body.split(None, 1)
        self.op = p[0]
        rest = p[1] if len(p) > 1 else ""
        ops = [t.strip() for t in rest.split(",")] if rest else []
        ops = [o.split()[0] if o and not o.startswith("op_sel") else o for o in ops]
        self.rest = rest
        op = self.op
        R = [regs(o) for o in ops]
        self.w = set(); self.r = set(); self.cls = "other"; self.A = self.B = self.C = set(); self.passes = 0
        self.states = 1
        if op == "s_nop": self.states = int(ops[0], 0) + 1
        if op.startswith("v_mfma") or op.startswith("v_smfmac"):
            self.cls = "mfma"; self.w = R[0]; self.A = R[1]; self.B = R[2]
            if op.startswith("v_smfmac"): self.C = R[0]; self.A = R[1] | R[3]
            else: self.C = R[3]
            self.r = self.A | self.B | self.C
            self.passes = 8 if "32x32" in op else 4
        elif op.startswith("v_"):
            self.cls = "valu"
            if op.startswith("v_cmp"): self.w = R[0]; self.r = set().union(*R[1:])
            elif op.startswith("v_permlane"): self.w = R[0] | R[1]; self.r = R[0] | R[1]
            elif op.startswith("v_readfirstlane") or op.startswith("v_readlane"): self.w = R[0]; self.r = set().union(*R[1:])
            else:
                self.w = R[0]; self.r = set().union(*R[1:]) if len(R) > 1 else set()
                if op.startswith(("v_fmac", "v_dot2c")): self.r |= R[0]
                if op.startswith("v_cndmask") and len(ops) == 3: self.r |= {("vcc", 0)}
        elif op.startswith(("buffer_", "global_")):
            self.cls = "vmem"
            if " lds" in (" " + rest) and op.startswith("buffer_load"):
                self.r = set().union(*R) | {("m0", 0)}; self.lds = True
            elif "load" in op: self.w = R[0]; self.r = set().union(*R[1:])
            elif op in ("buffer_inv", "buffer_wbl2"): pass
            else:
                self.r = set().union(*R)
                self.data = R[0] if op.startswith("buffer_") else R[1]
                if "atomic" in op and "sc0" in rest: self.w = R[0]
        elif op.startswith("ds_"):
            self.cls = "ds"
            if "read" in op or "permute" in op: self.w = R[0]; self.r = set().union(*R[1:])
            else: self.r = set().union(*R)
        elif op.startswith("s_"):
            self.cls = "salu"
            if op.startswith(("s_cmp", "s_cbranch", "s_branch", "s_waitcnt", "s_barrier", "s_nop", "s_endpgm", "s_setprio", "s_sleep", "s_bitcmp")):
                self.r = set().union(*R) if R else set()
            else:
                self.w = R[0] if R else set(); self.r = set().union(*R[1:]) if len(R) > 1 else set()
                if "saveexec" in op: self.w = self.w | {("exec", 0)}

def need(p, c):
    n = 0
    V = lambda s: {x for x in s if x[0] in "va" and x[0] != "vcc"}
    S = lambda s: {x for x in s if x[0] in ("s", "vcc")}
    if p.cls == "valu":
        isdot = p.op.startswith("v_dot")
        if c.cls == "mfma" and V(p.w) & c.r: n = max(n, 3 if isdot else 2)
        if isdot and V(p.w) & (c.r | c.w):
            if c.op == p.op:
                pass
            else: n = max(n, 3)
        if p.op in TRANS and c.cls == "valu" and c.op not in TRANS and V(p.w) & c.r: n = max(n, 1)
        if c.op.startswith("v_permlane") and V(p.w) & c.r: n = max(n, 2)
        if c.op.startswith(("v_readfirstlane", "v_readlane")) and V(p.w) & c.r: n = max(n, 1)
        if "dpp" in c.op or "row_" in c.rest or "quad_perm" in c.rest:
            if V(p.w) & c.r: n = max(n, 2)
        if S(p.w):
            if c.cls == "vmem" and S(p.w) & c.r: n = max(n, 5)
            if c.cls == "valu" and S(p.w) & c.r: n = max(n, 2)
            if c.cls == "salu" and S(p.w) & c.r: n = max(n, 1)
            if c.op.startswith("s_cbranch_vcc") and ("vcc", 0) in p.w: n = max(n, 1)
        if ("op_sel" in p.rest and p.op.startswith(("v_fma_mixlo", "v_fma_mixhi"))) and V(p.w) & (c.r | c.w): n = max(n, 1)
    if p.cls == "mfma":
        k = {4: 0, 8: 1}[p.passes]
        if c.cls == "mfma":
            if p.w & (c.A | c.B): n = max(n, (8, 12)[k])
            if p.w & c.C and not (p.w == c.C and p.passes == c.passes): n = max(n, (6, 10)[k])
            if p.w & c.w and not (p.w == c.w and p.passes == c.passes) : n = max(n, (6, 10)[k])
        elif c.cls in ("valu", "vmem", "ds"):
            if p.w & (c.r | c.w): n = max(n, (8, 12)[k])
            if c.cls == "valu" and p.C & c.w: n = max(n, (3, 7)[k])
    if p.cls == "vmem" and hasattr(p, "data") and len(p.data) > 2:
        if p.data & c.w: n = max(n, 2)
    if p.cls == "salu" and ("m0", 0) in p.w and getattr(c, "lds", False): n = max(n, 1)
    return n

def check(text, verbose=True):
    ins = []; labels = {}
    intext = False
    for no, line in enumerate(text.splitlines(), 1):
        s = line.split(";")[0].strip()
        if not s: continue
        if s.startswith(".text"): intext = True; continue
        if s.startswith(".section"): intext = False; continue
        if not intext or s.startswith("."): continue
        m = re.fullmatch(r"([\w.$]+):", s)
        if m: labels[m.group(1)] = len(ins); continue
        ins.append(I(line, no))
    def succ(i):
        x = ins[i]
        if x.op == "s_endpgm": return []
        if x.op == "s_branch": return [labels[x.rest.strip()]]
        if x.op.startswith("s_cbranch"): return [i + 1, labels[x.rest.strip()]]
        return [i + 1] if i + 1 < len(ins) else []
    bad = 0
    W = 13
    for i, p in enumerate(ins):
        if p.cls not in ("valu", "mfma", "vmem", "salu"): continue
        lim = 12 if p.cls == "mfma" else 5
        stack = [(j, 0) for j in succ(i)]; seen = set()
        while stack:
            j, d = stack.pop()
            if d >= lim or (j, d) in seen or j >= len(ins): continue
            seen.add((j, d))
            c = ins[j]
            n = need(p, c)
            if n > d:
                bad += 1
                if verbose: print(f"HAZARD need {n} have {d}:\n   L{p.no}: {p.line.strip()}\n   L{c.no}: {c.line.strip()}")
            for k in succ(j): stack.append((k, d + c.states))
    return bad

if __name__ == "__main__":
    b = check(open(sys.argv[1]).read())
    print("hazards:", b)
```

```python
import sys, struct, math
NAME = "parallel_sum__softmax_full_mha__glu_gated_glu__prompt"

def f2u(x): return struct.unpack("<I", struct.pack("<f", x))[0]
LOG2E = 1.4426950408889634
QSCALE = LOG2E / math.sqrt(18.0)

PL = 288
TTP = 432 * PL
WS_QKV = 0
WS_H = 8 << 20
WS_O = 28 << 20
WS_P = 32 << 20
WS_R = 44 << 20
WS_SIZE = 48 << 20

class Asm:
    def __init__(self): self.L = []
    def __call__(self, s, *a):
        self.L.append("    " + s)
    def label(self, n): self.L.append(n + ":")
    def raw(self, s): self.L.append(s)
    def text(self): return "\n".join(self.L) + "\n"

def vr(a, n=1): return f"v{a}" if n == 1 else f"v[{a}:{a+n-1}]"
def sr(a, n=1): return f"s{a}" if n == 1 else f"s[{a}:{a+n-1}]"

def srd(A, d, b, size):
    A(f"s_mov_b32 s{d}, s{b}")
    A(f"s_mov_b32 s{d+1}, s{b+1}")
    A(f"s_mov_b32 s{d+2}, {size}")
    A(f"s_mov_b32 s{d+3}, 0x00020000")

def spread(fill, ngaps, first, last):
    out = [[] for _ in range(ngaps)]
    if not fill: return out
    def cost(s):
        op = s.split()[0]
        if op in ("v_exp_f32", "v_rcp_f32"): return 2.0
        if op.startswith("s_"): return 0.5
        return 1.0
    tot = sum(cost(s) for s in fill)
    n = last - first
    acc = 0.0
    for s in fill:
        g = first + min(n - 1, int((acc + 0.5 * cost(s)) / tot * n))
        out[g].append(s); acc += cost(s)
    return out

def k1(A, P):
    X = 0; ACC = (144, 176); SP = 208; WR = 224
    vA0, vA1, vC1, vR, vSH, vSQ, vQS, vT = 248, 249, 250, 251, 252, 253, 254, 255
    SET = 73728
    sW, sRB, sCG, sNQ, sQ0, sP0, sNP, sRHO = 24, 25, 26, 27, 28, 29, 30, 31
    A.raw(".p2align 8"); A.label("k1_kernel")
    A("s_cmp_ge_u32 s2, 256"); A("s_cbranch_scc1 K1_EXIT")
    A("s_load_dwordx4 s[4:7], s[0:1], 0")
    A("s_load_dwordx4 s[8:11], s[0:1], 32")
    A("s_load_dwordx2 s[12:13], s[0:1], 72")
    A(f"v_lshrrev_b32 v1, 6, v0")
    A(f"v_and_b32 {vr(vT)}, 63, v0")
    A(f"v_readfirstlane_b32 s{sW}, v1")
    ncg = P["ncg"]; lg = ncg.bit_length() - 1
    nxc = 16 // ncg
    A("s_and_b32 s3, s2, 7"); A("s_lshr_b32 s14, s2, 3")
    A(f"s_and_b32 s15, s3, {nxc-1}")
    A(f"s_lshr_b32 s3, s3, {nxc.bit_length()-1}")
    A(f"s_lshl_b32 s15, s15, {lg}")
    A(f"s_and_b32 s32, s14, {ncg-1}")
    A(f"s_add_u32 s{sCG}, s15, s32")
    A(f"s_lshr_b32 s33, s14, {lg}")
    A(f"s_lshl_b32 s3, s3, {5-lg}")
    A(f"s_add_u32 s{sRB}, s3, s33")
    A(f"s_mul_i32 s32, s32, {P['rho_c']}")
    A(f"s_mul_i32 s33, s33, {P['rho_r']}")
    A(f"s_add_u32 s{sRHO}, s32, s33")
    for _ in range(3):
        A(f"s_cmp_ge_u32 s{sRHO}, 9"); A(f"s_cselect_b32 s32, 9, 0"); A(f"s_sub_u32 s{sRHO}, s{sRHO}, s32")
    A(f"s_lshr_b32 s32, s{sCG}, 1"); A(f"s_and_b32 s33, s{sCG}, 1")
    A(f"s_mul_i32 s{sP0}, s32, 9"); A("s_mul_i32 s34, s33, 5"); A(f"s_add_u32 s{sP0}, s{sP0}, s34")
    A(f"s_sub_u32 s{sNP}, 5, s33")
    A("s_min_u32 s34, s32, 3"); A(f"s_mul_i32 s{sQ0}, s32, 3"); A(f"s_add_u32 s{sQ0}, s{sQ0}, s34"); A(f"s_add_u32 s{sQ0}, s{sQ0}, s33")
    A("s_cmp_lt_u32 s32, 3"); A("s_cselect_b32 s34, 3, 2")
    A("s_cmp_eq_u32 s33, 1"); A(f"s_cselect_b32 s{sNQ}, s34, 1")
    A(f"s_cmp_ge_u32 s{sW}, 4"); A("s_cbranch_scc1 K1_LOADER")

    L = vT
    t = [ACC[0] + i for i in range(32)]
    vXE, vXO = t[0], t[1]; vXR = t[2:6]; sA = t[8:12]; sQ = t[12:16]; vOne = t[16]
    A(f"v_lshrrev_b32 v{t[20]}, 3, v{L}")
    A(f"v_mul_u32_u24 v{t[20]}, 1152, v{t[20]}")
    A(f"v_and_b32 v{t[21]}, 7, v{L}")
    A(f"v_lshrrev_b32 v{t[22]}, 4, v{L}")
    A(f"v_xor_b32 v{t[21]}, v{t[21]}, v{t[22]}")
    A(f"v_lshlrev_b32 v{t[21]}, 4, v{t[21]}")
    A(f"v_add_u32 v{vXE}, v{t[20]}, v{t[21]}")
    A(f"v_xor_b32 v{t[21]}, 64, v{t[21]}")
    A(f"v_add_u32 v{vXO}, v{t[20]}, v{t[21]}")
    sTT, sXROW, sSTG, sPB, sTMP = 36, 37, 38, 39, 40
    A(f"s_lshl_b32 s{sTT}, s{sRB}, 2"); A(f"s_add_u32 s{sTT}, s{sTT}, s{sW}")
    A(f"s_mul_i32 s{sXROW}, s{sTT}, {32*1152}")
    A(f"s_and_b32 s32, s{sNQ}, 1"); A(f"s_xor_b32 s33, s32, 1")
    A(f"s_mul_i32 s{sSTG}, s33, {SET}"); A(f"s_lshl_b32 s33, s{sW}, 14"); A(f"s_add_u32 s{sSTG}, s{sSTG}, s33")
    A(f"s_lshl_b32 s{sPB}, s{sRHO}, 7")
    A("s_waitcnt lgkmcnt(0)")
    srd(A, 16, 4, 2048 * 1152)
    srd(A, 20, 12, WS_SIZE)
    def x_issue(b):
        A(f"s_add_u32 s{sTMP}, s{sXROW}, s{sPB}")
        for q in range(4):
            A(f"s_add_u32 m0, s{sSTG}, {(b % 4) * 4096 + q * 1024}")
            if q: A(f"s_add_u32 s{sTMP}, s{sTMP}, 9216")
            else: A("s_nop 0")
            A(f"buffer_load_dwordx4 v{(vXE, vXO)[q & 1]}, s[16:19], s{sTMP} offen lds")
        A(f"s_add_u32 s{sPB}, s{sPB}, 128"); A(f"s_cmp_eq_u32 s{sPB}, 1152"); A(f"s_cselect_b32 s{sPB}, 0, s{sPB}")
    for b in range(4): x_issue(b)
    A(f"v_and_b32 v{t[20]}, 31, v{L}")
    A(f"v_lshrrev_b32 v{t[21]}, 5, v{L}")
    A(f"v_bfe_u32 v{t[22]}, v{L}, 1, 3")
    A(f"v_xor_b32 v{t[22]}, v{t[22]}, v{t[21]}")
    A(f"v_lshlrev_b32 v{t[23]}, 7, v{t[20]}")
    A(f"v_add_u32 v{t[23]}, s{sSTG}, v{t[23]}")
    for s in range(4):
        A(f"v_xor_b32 v{t[24]}, {2*s}, v{t[22]}")
        A(f"v_lshl_add_u32 v{vXR[s]}, v{t[24]}, 4, v{t[23]}")
    A(f"v_lshlrev_b32 v{vSH}, 4, v{L}")
    A(f"v_mul_u32_u24 v{vSQ}, {PL}, v{t[21]}")
    A(f"v_lshl_add_u32 v{vSQ}, v{t[20]}, 3, v{vSQ}")
    A(f"v_bfe_u32 v{t[22]}, v{L}, 2, 2")
    A(f"v_lshl_add_u32 v{t[23]}, v{t[21]}, 3, v{t[22]}")
    A(f"v_lshlrev_b32 v{t[23]}, 7, v{t[23]}")
    A(f"v_and_b32 v{t[24]}, 3, v{L}")
    A(f"v_lshl_add_u32 v{t[23]}, v{t[24]}, 3, v{t[23]}")
    A(f"v_bfe_u32 v{t[24]}, v{L}, 4, 1")
    A(f"v_lshl_add_u32 v{t[23]}, v{t[24]}, 5, v{t[23]}")
    A(f"v_bfe_u32 v{t[24]}, v{L}, 3, 1")
    A(f"v_lshl_add_u32 v{vA0}, v{t[24]}, 6, v{t[23]}")
    A(f"s_mul_i32 s33, s32, {SET}")
    A(f"v_add_u32 v{vA0}, s33, v{vA0}")
    A(f"v_xor_b32 v{vA1}, 64, v{vA0}")
    A(f"v_mov_b32 v{vOne}, 0x3f803f80")
    for r in sA + sQ: A(f"v_mov_b32 v{r}, 0")
    for b in range(9):
        A(f"s_waitcnt vmcnt({4 * (min(b + 3, 8) - b)})")
        for s in range(4):
            f = X + (4 * b + s) * 4
            A(f"ds_read_b128 {vr(f,4)}, v{vXR[s]} offset:{(b % 4) * 4096}")
        A("s_waitcnt lgkmcnt(0)")
        if b + 4 <= 8: x_issue(b + 4)
        if b == 4: A("s_barrier")
        for i in range(16):
            r = X + 16 * b + i
            A(f"v_dot2c_f32_bf16 v{sA[i & 3]}, v{vOne}, v{r}")
            A(f"v_dot2c_f32_bf16 v{sQ[i & 3]}, v{r}, v{r}")
    A("s_nop 2")
    A(f"v_add_f32 v{sA[0]}, v{sA[0]}, v{sA[1]}"); A(f"v_add_f32 v{sA[2]}, v{sA[2]}, v{sA[3]}")
    A(f"v_add_f32 v{sQ[0]}, v{sQ[0]}, v{sQ[1]}"); A(f"v_add_f32 v{sQ[2]}, v{sQ[2]}, v{sQ[3]}")
    A(f"v_add_f32 v{sA[0]}, v{sA[0]}, v{sA[2]}"); A(f"v_add_f32 v{sQ[0]}, v{sQ[0]}, v{sQ[2]}")
    A(f"v_mov_b32 v{sA[1]}, v{sA[0]}"); A(f"v_mov_b32 v{sQ[1]}, v{sQ[0]}")
    A("s_nop 1")
    A(f"v_permlane32_swap_b32 v{sA[0]}, v{sA[1]}"); A(f"v_permlane32_swap_b32 v{sQ[0]}, v{sQ[1]}")
    A("s_nop 1")
    A(f"v_add_f32 v{sA[0]}, v{sA[0]}, v{sA[1]}"); A(f"v_add_f32 v{sQ[0]}, v{sQ[0]}, v{sQ[1]}")
    vNM = sA[0]
    A(f"v_mul_f32 v{vNM}, {hex(f2u(-1.0/576))}, v{sA[0]}")
    A(f"v_mul_f32 v{sQ[0]}, {hex(f2u(1.0/576))}, v{sQ[0]}")
    A(f"v_fma_f32 v{sQ[0]}, -v{vNM}, v{vNM}, v{sQ[0]}")
    A(f"v_max_f32 v{sQ[0]}, 0, v{sQ[0]}")
    A(f"v_add_f32 v{sQ[0]}, {hex(f2u(1e-5))}, v{sQ[0]}")
    A(f"v_rsq_f32 v{vR}, v{sQ[0]}")
    A(f"v_mov_b32 v{t[17]}, 0x00003f80"); A(f"v_mov_b32 v{t[18]}, 0x3f800000")
    A(f"v_mul_f32 v{vC1}, {hex(f2u(-LOG2E))}, v{vR}")
    A(f"s_cmp_lg_u32 s{sCG}, 0"); A("s_cbranch_scc1 K1_NOR")
    A(f"v_lshlrev_b32 v{t[24]}, 2, v{t[20]}")
    A(f"s_lshl_b32 s33, s{sTT}, 7"); A(f"s_add_u32 s33, s33, {WS_R}")
    A(f"buffer_store_dword v{vR}, v{t[24]}, s[20:23], s33 offen")
    A.label("K1_NOR")
    tl = t[24:32]
    for g in range(0, 144, 4):
        for i in range(4):
            A(f"v_dot2_f32_bf16 v{tl[2*i]}, v{X+g+i}, v{t[17]}, v{vNM}")
            A(f"v_dot2_f32_bf16 v{tl[2*i+1]}, v{X+g+i}, v{t[18]}, v{vNM}")
        A("s_nop 0")
        for i in range(4):
            A(f"v_cvt_pk_bf16_f32 v{X+g+i}, v{tl[2*i]}, v{tl[2*i+1]}")
    sHOFF, sQOFF, sQSEG, sQREM, sPREM = 41, 42, 43, 44, 45
    A(f"s_mul_i32 s{sHOFF}, s{sTT}, {288*1024}"); A(f"s_lshl_b32 s33, s{sP0}, 12"); A(f"s_add_u32 s{sHOFF}, s{sHOFF}, s33")
    A(f"s_add_u32 s{sHOFF}, s{sHOFF}, {WS_H}")
    A(f"s_mul_i32 s{sQOFF}, s{sTT}, {TTP}"); A(f"s_mul_i32 s33, s{sQ0}, {16*PL}"); A(f"s_add_u32 s{sQOFF}, s{sQOFF}, s33")
    A(f"s_mov_b32 s{sQSEG}, s{sQ0}"); A(f"s_mov_b32 s{sQREM}, s{sNQ}"); A(f"s_mov_b32 s{sPREM}, s{sNP}")
    A("s_barrier")

    def wread(i):
        ks = (i % 72) >> 1; tile = i & 1; slot = WR + (i % 6) * 4
        off = (ks % 18) * 2048
        a = (vA0, vA1)[tile]
        return [f"ds_read_b64_tr_b16 {vr(slot,2)}, v{a} offset:{off}",
                f"ds_read_b64_tr_b16 {vr(slot+2,2)}, v{a} offset:{off+512}"]
    for i in range(4):
        for s in wread(i): A(s)
    A(f"s_cmp_eq_u32 s32, 0"); A("s_cbranch_scc1 K1_F0")

    def epi_qkv(acc):
        F = [f"s_cmp_lt_u32 s{sQSEG}, 9", f"s_cselect_b32 s33, {hex(f2u(QSCALE))}, 1.0", f"v_mul_f32 v{vQS}, s33, v{vR}"]
        for tile in range(2):
            for j in range(4):
                b = acc + tile * 16 + j * 4
                F += [f"v_mul_f32 v{b+i}, v{b+i}, v{vQS}" for i in range(4)]
                F += [f"v_cvt_pk_bf16_f32 v{b}, v{b}, v{b+1}", f"v_cvt_pk_bf16_f32 v{b+1}, v{b+2}, v{b+3}"]
                F += [f"buffer_store_dwordx2 {vr(b,2)}, v{vSQ}, s[20:23], s{sQOFF} offen offset:{(tile*8+2*j)*PL}"]
        F += [f"s_add_u32 s{sQOFF}, s{sQOFF}, {16*PL}", f"s_add_u32 s{sQSEG}, s{sQSEG}, 1", f"s_sub_u32 s{sQREM}, s{sQREM}, 1"]
        return F
    def epi_gate(acc):
        F = []
        for e in range(32 + 5):
            if e < 32: F.append(f"v_mul_f32 v{acc+e}, v{acc+e}, v{vC1}")
            if 0 <= e - 1 < 32: F.append(f"v_exp_f32 v{acc+e-1}, v{acc+e-1}")
            if 0 <= e - 2 < 32: F.append(f"v_add_f32 v{acc+e-2}, 1.0, v{acc+e-2}")
            if 0 <= e - 3 < 32: F.append(f"v_rcp_f32 v{acc+e-3}, v{acc+e-3}")
            if 0 <= e - 5 < 32 and (e - 5) & 1:
                F.append(f"v_cvt_pk_f16_f32 v{SP+(e-5)//2}, v{acc+e-6}, v{acc+e-5}")
            if e >= 32: F.append("s_nop 0")
        return F
    def epi_up(acc):
        F = []
        for g in range(4):
            b = acc + g * 8
            for i in range(8):
                e = g * 8 + i
                F.append(f"v_fma_mix_f32 v{b+i}, v{b+i}, v{SP+e//2}, 0 op_sel:[0,{e&1},0] op_sel_hi:[0,1,0]")
            F += [f"v_cvt_pk_bf16_f32 v{b+i}, v{b+2*i}, v{b+2*i+1}" for i in range(4)]
            F.append(f"buffer_store_dwordx4 {vr(b,4)}, v{vSH}, s[20:23], s{sHOFF} offen offset:{g*1024}")
        F.append(f"s_add_u32 s{sHOFF}, s{sHOFF}, 4096")
        return F
    def body(cur, fill):
        G = spread(fill, 72, 4, 70)
        for i in range(72):
            ks = i >> 1; tile = i & 1; d = ACC[cur] + tile * 16; slot = WR + (i % 6) * 4
            if i % 2 == 0: A("s_waitcnt lgkmcnt(4)")
            c = "0" if ks == 0 else vr(d, 16)
            A(f"v_mfma_f32_32x32x16_bf16 {vr(d,16)}, {vr(slot,4)}, {vr(X+4*ks,4)}, {c}")
            n = i + 4
            if n % 24 == 0: A("s_barrier")
            if n % 36 == 0:
                dlt = 36864 if not (cur == 1 and n == 72) else -110592
                A(f"v_add_u32 v{vA0}, {dlt}, v{vA0}"); A(f"v_add_u32 v{vA1}, {dlt}, v{vA1}")
            for s in wread(n): A(s)
            for s in G[i]: A(s)
    body(1, [])
    A.label("K1_X10"); body(0, epi_qkv(ACC[1]))
    A(f"s_cmp_eq_u32 s{sQREM}, 0"); A("s_cbranch_scc1 K1_UG")
    A.label("K1_X01"); body(1, epi_qkv(ACC[0]))
    A("s_branch K1_X10")
    A.label("K1_F0"); body(0, [])
    A("s_branch K1_X01")
    A.label("K1_GU"); body(0, epi_up(ACC[1]))
    A.label("K1_UG"); body(1, epi_gate(ACC[0]) + [f"s_sub_u32 s{sPREM}, s{sPREM}, 1"])
    A(f"s_cmp_lg_u32 s{sPREM}, 0"); A("s_cbranch_scc1 K1_GU")
    A("s_nop 7"); A("s_nop 3")
    for s in epi_up(ACC[1]): A(s)
    A.label("K1_EXIT")
    A("s_endpgm")

    A.label("K1_LOADER")
    vQ, vF, vCur = 1, 2, 3
    sLW, sPH, sCH, sSO, sSTEP, sBLK, sM0, sCOL, sN, sPITCH64 = 36, 37, 38, 39, 40, 41, 42, 43, 44, 45
    A(f"s_sub_u32 s{sLW}, s{sW}, 4")
    A(f"v_lshrrev_b32 v4, 3, v{L}")
    A(f"s_lshl_b32 s33, s{sLW}, 3"); A(f"v_add_u32 v5, s33, v4")
    A(f"v_bfe_u32 v6, v{L}, 4, 1"); A(f"v_lshlrev_b32 v6, 2, v6")
    A(f"v_and_b32 v7, 7, v{L}"); A(f"v_xor_b32 v7, v7, v6"); A(f"v_lshlrev_b32 v7, 4, v7")
    A(f"v_mul_u32_u24 v{vQ}, 3456, v5"); A(f"v_add_u32 v{vQ}, v{vQ}, v7")
    A(f"v_mul_u32_u24 v{vF}, 9216, v5"); A(f"v_add_u32 v{vF}, v{vF}, v7")
    A(f"s_and_b32 s32, s{sNQ}, 1"); A(f"s_mul_i32 s{sM0}, s32, {SET}"); A(f"s_lshl_b32 s33, s{sLW}, 10"); A(f"s_add_u32 s{sM0}, s{sM0}, s33")
    A(f"s_add_u32 s46, s33, {2*SET}")
    A(f"s_mov_b32 s{sPH}, 0"); A(f"s_mov_b32 s{sCH}, 0"); A(f"s_mov_b32 s{sBLK}, s{sRHO}")
    A(f"s_lshl_b32 s{sN}, s{sNP}, 1"); A(f"s_add_u32 s{sN}, s{sN}, s{sNQ}"); A(f"s_mul_i32 s{sN}, s{sN}, 3")
    A("s_mov_b32 s19, 0x00020000")
    A("s_waitcnt lgkmcnt(0)")
    uid = [0]
    def issue_chunk():
        u = uid[0]; uid[0] += 1
        A(f"s_cmp_lg_u32 s{sCH}, 0"); A(f"s_cbranch_scc1 K1_LI{u}")
        A(f"s_cmp_ge_u32 s{sPH}, s{sNQ}"); A(f"s_cbranch_scc1 K1_LF{u}")
        A("s_mov_b32 s16, s6"); A("s_mov_b32 s17, s7"); A(f"s_mov_b32 s18, {576*3456}")
        A(f"s_add_u32 s{sCOL}, s{sQ0}, s{sPH}"); A(f"s_lshl_b32 s{sCOL}, s{sCOL}, 7")
        A(f"s_mov_b32 s{sSTEP}, {32*3456}"); A(f"v_mov_b32 v{vCur}, v{vQ}")
        A(f"s_branch K1_LG{u}")
        A.label(f"K1_LF{u}")
        A(f"s_sub_u32 s33, s{sPH}, s{sNQ}"); A("s_bitcmp1_b32 s33, 0")
        A("s_cselect_b32 s16, s10, s8"); A("s_cselect_b32 s17, s11, s9"); A(f"s_mov_b32 s18, {576*9216}")
        A("s_lshr_b32 s33, s33, 1"); A(f"s_add_u32 s{sCOL}, s{sP0}, s33"); A(f"s_lshl_b32 s{sCOL}, s{sCOL}, 7")
        A(f"s_mov_b32 s{sSTEP}, {32*9216}"); A(f"v_mov_b32 v{vCur}, v{vF}")
        A.label(f"K1_LG{u}")
        A(f"s_lshl_b32 s{sPITCH64}, s{sSTEP}, 1")
        A(f"s_add_u32 s{sPH}, s{sPH}, 1")
        A.label(f"K1_LI{u}")
        for blk in range(3):
            A(f"s_mul_i32 s{sSO}, s{sBLK}, s{sPITCH64}"); A(f"s_add_u32 s{sSO}, s{sSO}, s{sCOL}")
            A(f"s_add_u32 m0, s{sM0}, {blk*8192}")
            A(f"s_add_u32 s{sBLK}, s{sBLK}, 1")
            A(f"buffer_load_dwordx4 v{vCur}, s[16:19], s{sSO} offen lds")
            A(f"s_add_u32 m0, s{sM0}, {blk*8192+4096}")
            A(f"s_add_u32 s{sSO}, s{sSO}, s{sSTEP}")
            A(f"buffer_load_dwordx4 v{vCur}, s[16:19], s{sSO} offen lds")
            A(f"s_cmp_eq_u32 s{sBLK}, 9"); A(f"s_cselect_b32 s{sBLK}, 0, s{sBLK}")
        A(f"s_add_u32 s{sM0}, s{sM0}, 24576"); A(f"s_cmp_ge_u32 s{sM0}, s46"); A(f"s_cselect_b32 s33, {2*SET}, 0"); A(f"s_sub_u32 s{sM0}, s{sM0}, s33")
        A(f"s_add_u32 s{sCH}, s{sCH}, 1"); A(f"s_cmp_eq_u32 s{sCH}, 3"); A(f"s_cselect_b32 s{sCH}, 0, s{sCH}")
    issue_chunk()
    A("s_barrier")
    issue_chunk(); issue_chunk()
    A("s_waitcnt vmcnt(12)"); A("s_barrier")
    issue_chunk(); issue_chunk()
    A(f"s_sub_u32 s{sN}, s{sN}, 5")
    A.label("K1_LLOOP")
    A("s_waitcnt vmcnt(18)"); A("s_barrier")
    issue_chunk()
    A(f"s_sub_u32 s{sN}, s{sN}, 1"); A(f"s_cmp_lg_u32 s{sN}, 0"); A("s_cbranch_scc1 K1_LLOOP")
    for n in (18, 12, 6, 0):
        A(f"s_waitcnt vmcnt({n})"); A("s_barrier")
    A("s_endpgm")

def descriptor(A, name, nv, ns=96):
    A.raw(f".amdhsa_kernel {name}")
    A.raw(f"  .amdhsa_next_free_vgpr {nv}")
    A.raw(f"  .amdhsa_next_free_sgpr {ns}")
    A.raw(f"  .amdhsa_accum_offset {(nv+3)//4*4}")
    A.raw("  .amdhsa_group_segment_fixed_size 0")
    A.raw("  .amdhsa_kernarg_size 80")
    A.raw("  .amdhsa_user_sgpr_count 2")
    A.raw("  .amdhsa_user_sgpr_kernarg_segment_ptr 1")
    A.raw("  .amdhsa_system_sgpr_workgroup_id_x 1")
    A.raw(".end_amdhsa_kernel")

def k2(A, P):
    A.raw(".p2align 8"); A.label("k2_kernel")
    A("s_cmp_ge_u32 s2, 512"); A("s_cbranch_scc1 K2_EXIT")
    A("s_load_dwordx2 s[4:5], s[0:1], 48")
    A("s_load_dwordx2 s[12:13], s[0:1], 72")
    A("v_lshrrev_b32 v1, 6, v0")
    A("v_and_b32 v0, 63, v0")
    A("v_readfirstlane_b32 s24, v1")
    A("s_and_b32 s3, s2, 7"); A("s_bfe_u32 s14, s2, 0x50003")
    A("v_and_b32 v2, 31, v0")
    A("v_lshrrev_b32 v3, 5, v0")
    A("v_bfe_u32 v4, v0, 2, 2")
    A("v_and_b32 v5, 3, v0")
    A("v_bfe_u32 v6, v0, 4, 1")
    if P["attn_first"]:
        A("s_cmp_ge_u32 s2, 256")
    else:
        A("s_cmp_lt_u32 s2, 256")
    A("s_cbranch_scc1 K2_GEMM")
    attention(A, P)
    A.label("K2_EXIT")
    A("s_endpgm")
    A.label("K2_GEMM")
    gemm2(A, P)

def attention(A, P):
    sW, sPAR, sTTA, sBLK, sSRC, sSLOT, sCNT, sDLT, sREM = 24, 25, 26, 27, 28, 29, 30, 31, 34
    CH = 24576; ONES = 3 * CH; TP = 2 * 5 * PL
    S = [64, 80, 96, 112]; O = [128, 144]
    QM = [16, 20]; QR = [24, 26]
    KM = [28, 32]; KR = [36, 38]
    V = [40, 48]
    vDM = [160 + i for i in range(6)]
    vAK, vAR, vAV, vINC, vMSK, vIDX, vT0, vT1, vT2, vT3 = 8, 9, 10, 11, 12, 13, 14, 15, 56, 57
    A("s_lshl_b32 s32, s3, 2"); A("s_and_b32 s33, s14, 3"); A("s_add_u32 s32, s32, s33")
    A(f"s_and_b32 s{sPAR}, s32, 1"); A("s_lshr_b32 s33, s32, 1")
    A(f"s_mul_i32 s{sBLK}, s33, 9"); A(f"s_lshl_b32 s33, s{sPAR}, 2"); A(f"s_add_u32 s{sBLK}, s{sBLK}, s33")
    A("s_lshr_b32 s33, s14, 2"); A(f"s_lshl_b32 s{sTTA}, s33, 3"); A(f"s_lshl_b32 s33, s{sW}, 1"); A(f"s_add_u32 s{sTTA}, s{sTTA}, s33")
    A(f"s_xor_b32 s{sREM}, s{sPAR}, 1"); A(f"s_mul_i32 s{sREM}, s{sREM}, {4*PL}")
    A(f"s_lshl_b32 s33, s{sW}, 6")
    A(f"s_mov_b32 s35, {TTP}")
    for i in range(6):
        d = vDM[i]
        A(f"v_add_u32 v{vT0}, s33, v0")
        if i: A(f"v_add_u32 v{vT0}, {i*256}, v{vT0}")
        A(f"v_mul_u32_u24 v{vT1}, 1457, v{vT0}"); A(f"v_lshrrev_b32 v{vT1}, 17, v{vT1}")
        A(f"v_mul_u32_u24 v{vT2}, 90, v{vT1}"); A(f"v_sub_u32 v{vT2}, v{vT0}, v{vT2}")
        A(f"v_lshrrev_b32 v{vT3}, 1, v{vT1}"); A(f"v_mul_lo_u32 v{vT3}, v{vT3}, s35")
        A(f"v_and_b32 v{vT1}, 1, v{vT1}"); A(f"v_mul_u32_u24 v{vT1}, {144*PL}, v{vT1}")
        A(f"v_lshl_add_u32 v{d}, v{vT2}, 4, v{vT3}"); A(f"v_add_u32 v{d}, v{d}, v{vT1}")
        if i == 5:
            A(f"v_cmp_gt_u32 vcc, 1440, v{vT0}"); A(f"v_mov_b32 v{vT1}, 0x7ffffff0"); A("s_nop 0")
            A(f"v_cndmask_b32 v{d}, v{vT1}, v{d}, vcc")
    A(f"s_mul_i32 s{sSRC}, s{sBLK}, {PL}")
    A(f"s_mul_i32 s36, s{sTTA}, {TTP}"); A(f"s_add_u32 s36, s36, s{sSRC}")
    A(f"s_add_u32 s37, s36, {TTP}")
    A(f"s_add_u32 s{sSRC}, s{sSRC}, {144*PL}")
    A(f"s_lshl_b32 s38, s{sW}, 10")
    A("s_waitcnt lgkmcnt(0)")
    srd(A, 20, 12, WS_SIZE)
    def dma(slot_sgpr_or_imm):
        for i in range(6):
            A(f"s_add_u32 m0, s{sSLOT}, {i*4096}")
            A("s_nop 0")
            A(f"buffer_load_dwordx4 v{vDM[i]}, s[20:23], s{sSRC} offen lds")
        A(f"s_add_u32 s{sSRC}, s{sSRC}, {8*TTP}")
    A(f"s_mov_b32 s{sSLOT}, s38")
    dma(None)
    A(f"v_lshl_add_u32 v{vT0}, v3, 1, s{sPAR}"); A(f"v_mul_u32_u24 v{vT0}, {PL}, v{vT0}")
    A(f"v_lshl_add_u32 v{vAK}, v2, 3, v{vT0}")
    A(f"s_lshl_b32 s33, s{sPAR}, 2"); A(f"s_add_u32 s33, s33, s{sREM}")
    A(f"v_lshl_add_u32 v{vAR}, v2, 3, s33")
    for q, so in ((0, 36), (1, 37)):
        A(f"buffer_load_dwordx2 {vr(QM[q],2)}, v{vAK}, s[20:23], s{so} offen")
        A(f"buffer_load_dwordx2 {vr(QM[q]+2,2)}, v{vAK}, s[20:23], s{so} offen offset:{PL}")
        A(f"buffer_load_dword v{QR[q]}, v{vAR}, s[20:23], s{so} offen")
    A(f"v_add_u32 v{vT0}, s{sPAR}, v5"); A(f"v_mul_u32_u24 v{vT0}, {PL}, v{vT0}")
    A(f"v_mov_b32 v{vT1}, s{sREM}")
    A(f"v_cmp_eq_u32 vcc, 0, v6"); A("s_nop 1"); A(f"v_cndmask_b32 v{vT0}, v{vT1}, v{vT0}, vcc")
    A(f"v_lshl_add_u32 v{vT1}, v3, 3, v4")
    A(f"v_lshl_add_u32 v{vT0}, v{vT1}, 3, v{vT0}"); A(f"v_add_u32 v{vT0}, {5*PL}, v{vT0}")
    A(f"v_mul_u32_u24 v{vT1}, v5, v6")
    A(f"v_cmp_eq_u32 vcc, 0, v{vT1}"); A(f"v_mov_b32 v{vT2}, {ONES}"); A(f"v_mov_b32 v{vT3}, {TP}")
    A(f"v_cndmask_b32 v{vAV}, v{vT2}, v{vT0}, vcc")
    A(f"v_cndmask_b32 v{vINC}, 0, v{vT3}, vcc")
    A(f"v_cndmask_b32 v{vMSK}, 0, -1, vcc")
    A(f"v_mov_b32 v{vT0}, 0x3f803f80"); A(f"v_lshlrev_b32 v{vT1}, 2, v0"); A(f"v_add_u32 v{vT1}, {ONES}, v{vT1}")
    A(f"ds_write_b32 v{vT1}, v{vT0}")
    A(f"v_mov_b32 v{vIDX}, 0xdddddddd")
    for b in range(2): A(f"v_mov_b32 v{KR[b]+1}, 0x3f803f80")
    for q in range(2):
        A(f"v_mov_b32 v{QR[q]+1}, 0")
        for i in range(16): A(f"v_mov_b32 v{O[q]+i}, 0")
    for i in range(16): A(f"v_mov_b32 v{S[3]+i}, 0")
    for i in range(8): A(f"v_mov_b32 v{V[1]+i}, 0")
    A(f"v_cmp_eq_u32 s[40:41], 0, v3")
    A("s_waitcnt vmcnt(0) lgkmcnt(0)")
    A("s_barrier")
    A(f"s_add_u32 s{sSLOT}, s38, {CH}")
    dma(None)
    A(f"s_add_u32 s{sSLOT}, s38, {2*CH}")
    def kread(buf, off):
        return [f"ds_read_b64 {vr(KM[buf],2)}, v{vAK} offset:{off}", f"ds_read_b64 {vr(KM[buf]+2,2)}, v{vAK} offset:{off+PL}",
                f"ds_read_b32 v{KR[buf]}, v{vAR} offset:{off}"]
    def vread(buf):
        return [f"ds_read_b64_tr_b16 {vr(V[buf]+4*g+2*t,2)}, v{vAV} offset:{(16*g+4*t)*8}" for g in range(2) for t in range(2)]
    def qk(st, kb, q):
        return [f"v_mfma_f32_32x32x8_bf16 {vr(S[st],16)}, {vr(KR[kb],2)}, {vr(QR[q],2)}, 0",
                f"v_mfma_f32_32x32x16_bf16 {vr(S[st],16)}, {vr(KM[kb],4)}, {vr(QM[q],4)}, {vr(S[st],16)}"]
    def pv(st, vb, q):
        return [f"v_smfmac_f32_32x32x32_bf16 {vr(O[q],16)}, {vr(V[vb]+4*g,4)}, {vr(S[st]+8*g,8)}, v{vIDX}" for g in range(2)]
    for s in kread(0, 0) + kread(1, TP): A(s)
    for q in range(2): A(f"v_cndmask_b32 v{QR[q]}, 0, v{QR[q]}, s[40:41]")
    A("s_waitcnt lgkmcnt(0)")
    for q in range(2):
        for s in qk(q, 0, q): A(s)
    A("s_nop 7"); A("s_nop 7")
    def set_m(q, m, t0, t1, t2):
        A(f"v_xor_b32 v{t0}, 0x80000000, v{m}")
        A(f"v_and_b32 v{t1}, 0xffff0000, v{t0}")
        A(f"v_sub_f32 v{t0}, v{t0}, v{t1}")
        A(f"v_and_b32 v{t2}, 0xffff0000, v{t0}")
        A(f"v_sub_f32 v{t0}, v{t0}, v{t2}")
        A(f"v_lshrrev_b32 v{t1}, 16, v{t1}"); A(f"v_or_b32 v{t1}, v{t1}, v{t2}")
        A(f"v_lshrrev_b32 v{t0}, 16, v{t0}")
        A(f"v_cndmask_b32 v{QR[q]+1}, v{t0}, v{t1}, s[40:41]")
    def rowmax(st, m, t):
        b = S[st]
        A(f"v_max3_f32 v{m}, v{b}, v{b+1}, v{b+2}")
        for i in range(3, 15, 2): A(f"v_max3_f32 v{m}, v{m}, v{b+i}, v{b+i+1}")
        A(f"v_max_f32 v{m}, v{m}, v{b+15}")
        A(f"v_mov_b32 v{t}, v{m}"); A("s_nop 1")
        A(f"v_permlane32_swap_b32 v{m}, v{t}"); A("s_nop 1")
        A(f"v_max_f32 v{m}, v{m}, v{t}")
    for q in range(2):
        rowmax(q, vT3, vT0)
        A(f"v_add_f32 v{vT3}, {hex(f2u(float(P['bias'])))}, v{vT3}")
        set_m(q, vT3, vT0, vT1, vT2)
    A("s_nop 1")
    for q in range(2):
        for s in qk(q, 0, q): A(s)
    A("s_nop 7"); A("s_nop 3")
    A(f"s_mov_b32 s{sCNT}, 0")
    A(f"s_mov_b32 s39, 0")
    A(f"s_mov_b32 s46, {-2*CH & 0xffffffff}")
    if P["attn_prio"]: A(f"s_setprio {P['attn_prio']}")
    A.label("K2_ALOOP")
    A("s_add_u32 s39, s39, 1"); A("s_cmp_eq_u32 s39, 3"); A(f"s_cselect_b32 s{sDLT}, s46, {CH}"); A("s_cselect_b32 s39, 0, s39")
    for per in range(16):
        t = per >> 1; q = per & 1
        M = [None] * 4
        p_ = pv((per - 1) % 4, ((per - 1) >> 1) % 2, (per - 1) & 1)
        k_ = qk((per + 2) % 4, (t + 1) % 2, q)
        M = [k_[0], p_[0], k_[1], p_[1]]
        ex = [[] for _ in range(4)]
        if q == 0:
            pre = []
            if t == 6:
                pre = ["s_waitcnt vmcnt(0)", "s_barrier", f"v_add_u32 v{vAK}, s{sDLT}, v{vAK}", f"v_add_u32 v{vAR}, s{sDLT}, v{vAR}"]
            vr_ = vread(t % 2); kr_ = kread(t % 2, ((t + 2) % 8) * TP)
            ex[0] = vr_[:2]; ex[1] = vr_[2:]
            if t < 7: ex[2] = [f"v_add_u32 v{vAV}, v{vAV}, v{vINC}"]
            else: ex[2] = [f"s_sub_u32 s33, s{sDLT}, {7*TP}", f"v_and_b32 v{vT0}, s33, v{vMSK}", f"v_add_u32 v{vAV}, v{vAV}, v{vT0}"]
            ex[2] = ex[2] + pre + kr_[:1]; ex[3] = kr_[1:]
        for sl in range(4):
            if q == 1 and sl == 1: A("s_waitcnt lgkmcnt(0)")
            A(M[sl])
            for s in ex[sl]: A(s)
            for i in range(4):
                r = S[per % 4] + 4 * sl + i
                A(f"v_exp_f32 v{r}, v{r}")
        if per == 13:
            A(f"s_cmp_ge_u32 s{sCNT}, 6"); A("s_cbranch_scc1 K2_ANODMA")
            dma(None)
            A(f"s_add_u32 s{sSLOT}, s{sSLOT}, {CH}"); A(f"s_cmp_ge_u32 s{sSLOT}, {3*CH}"); A(f"s_cselect_b32 s33, {3*CH}, 0"); A(f"s_sub_u32 s{sSLOT}, s{sSLOT}, s33")
            A.label("K2_ANODMA")
    A(f"s_add_u32 s{sCNT}, s{sCNT}, 1"); A(f"s_cmp_lt_u32 s{sCNT}, 8"); A("s_cbranch_scc1 K2_ALOOP")
    A("s_nop 1")
    for s in pv(3, 1, 1): A(s)
    A("s_nop 7"); A("s_nop 7")

    A("s_mov_b32 s33, 0x207"); A("s_mov_b64 s[42:43], 0")
    for q in range(2):
        for r in list(range(13)):
            A(f"v_cmp_class_f32 vcc, v{O[q]+r}, s33" if False else f"v_cmp_class_f32_e64 vcc, v{O[q]+r}, s33")
            A("s_nop 0"); A("s_or_b64 s[42:43], s[42:43], vcc")
        A(f"v_cmp_nlt_f32 vcc, 0, v{O[q]+12}"); A("s_nop 0"); A("s_or_b64 s[42:43], s[42:43], vcc")
    if P.get("force_fallback"): A("s_mov_b64 s[42:43], 1")
    A("s_cmp_eq_u64 s[42:43], 0"); A("s_cbranch_scc1 K2_AOUT")
    vM, vGV = 58, 59
    A(f"v_lshl_add_u32 v{vT0}, v3, 1, s{sPAR}"); A(f"v_mul_u32_u24 v{vT0}, {PL}, v{vT0}")
    A(f"v_lshl_add_u32 v{vAK}, v2, 3, v{vT0}")
    A(f"s_lshl_b32 s33, s{sPAR}, 2"); A(f"s_add_u32 s33, s33, s{sREM}")
    A(f"v_lshl_add_u32 v{vAR}, v2, 3, s33")
    A(f"v_lshrrev_b32 v{vT0}, 2, v2"); A(f"v_add_u32 v{vT0}, s{sPAR}, v{vT0}"); A(f"v_mul_u32_u24 v{vT0}, {PL}, v{vT0}")
    A(f"v_mov_b32 v{vT1}, s{sREM}"); A(f"v_cmp_gt_u32 vcc, 16, v2"); A("s_nop 1"); A(f"v_cndmask_b32 v{vT0}, v{vT1}, v{vT0}, vcc")
    A(f"v_lshl_add_u32 v{vT0}, v5, 1, v{vT0}"); A(f"v_lshl_add_u32 v{vGV}, v3, 6, v{vT0}")
    A(f"v_cmp_gt_u32 s[44:45], 20, v2")
    A(f"v_mov_b32 v60, 0x3f803f80")
    for q in range(2):
        A(f"s_mul_i32 s{sSRC}, s{sBLK}, {PL}"); A(f"s_add_u32 s{sSRC}, s{sSRC}, {144*PL}")
        A(f"v_mov_b32 v{QR[q]+1}, 0"); A(f"v_mov_b32 v{vM}, 0xff7fffff")
        for i in range(16): A(f"v_mov_b32 v{O[q]+i}, 0")
        A(f"s_mov_b32 s{sCNT}, 0")
        A.label(f"K2_AFB{q}")
        A(f"s_add_u32 s33, s{sSRC}, {144*PL}")
        A(f"buffer_load_dwordx2 {vr(KM[0],2)}, v{vAK}, s[20:23], s{sSRC} offen")
        A(f"buffer_load_dwordx2 {vr(KM[0]+2,2)}, v{vAK}, s[20:23], s{sSRC} offen offset:{PL}")
        A(f"buffer_load_dword v{KR[0]}, v{vAR}, s[20:23], s{sSRC} offen")
        for g in range(2):
            for j in range(8):
                A(f"buffer_load_ushort v{S[1]+8*g+j}, v{vGV}, s[20:23], s33 offen offset:{(16*g+j)*8}")
        A("s_waitcnt vmcnt(0)")
        for s in qk(0, 0, q): A(s)
        for i in range(8):
            A(f"v_lshl_or_b32 v{vT0}, v{S[1]+2*i+1}, 16, v{S[1]+2*i}")
            A(f"v_cndmask_b32 v{V[0]+i}, v60, v{vT0}, s[44:45]")
        rowmax(0, vT3, vT0)
        A(f"v_max_f32 v{vT3}, v{vT3}, v{vM}")
        A(f"v_sub_f32 v{vT0}, v{vM}, v{vT3}"); A(f"v_exp_f32 v{vT0}, v{vT0}"); A(f"v_mov_b32 v{vM}, v{vT3}")
        for i in range(16): A(f"v_sub_f32 v{S[0]+i}, v{S[0]+i}, v{vM}")
        for i in range(16): A(f"v_exp_f32 v{S[0]+i}, v{S[0]+i}")
        for i in range(16): A(f"v_mul_f32 v{O[q]+i}, v{O[q]+i}, v{vT0}")
        A("s_nop 1")
        for s in pv(0, 0, q): A(s)
        A(f"s_add_u32 s{sSRC}, s{sSRC}, {TTP}")
        A("s_nop 7"); A("s_nop 3")
        A(f"s_add_u32 s{sCNT}, s{sCNT}, 1"); A(f"s_cmp_lt_u32 s{sCNT}, 64"); A(f"s_cbranch_scc1 K2_AFB{q}")
    A.label("K2_AOUT")
    def qoff(dst, qreg):
        A(f"v_lshrrev_b32 v{dst}, 1, v{qreg}"); A(f"v_lshlrev_b32 v{dst}, 9, v{dst}")
        A(f"v_and_b32 v{qreg}, 1, v{qreg}"); A(f"v_lshl_add_u32 v{dst}, v{qreg}, 3, v{dst}")
        A(f"v_lshl_add_u32 v{dst}, v2, 4, v{dst}")
    A(f"s_add_u32 s33, s{sBLK}, s{sPAR}")
    A(f"v_add_u32 v{vT0}, s33, v3"); qoff(vAK, vT0)
    A(f"s_xor_b32 s33, s{sPAR}, 1"); A("s_lshl_b32 s33, s33, 2"); A(f"s_add_u32 s33, s33, s{sBLK}")
    A(f"v_mov_b32 v{vT0}, s33"); qoff(vAR, vT0)
    A(f"s_lshl_b32 s33, s{sPAR}, 2"); A(f"v_add_u32 v{vAR}, s33, v{vAR}")
    A(f"v_mov_b32 v{vT1}, 0x7ffffff0"); A(f"v_cndmask_b32 v{vAR}, v{vT1}, v{vAR}, s[40:41]")
    A(f"s_mul_i32 s36, s{sTTA}, 36864"); A(f"s_add_u32 s36, s36, {WS_O}"); A("s_add_u32 s37, s36, 36864")
    A(f"s_cmp_eq_u32 s{sPAR}, 0"); A("s_cselect_b64 vcc, -1, 0")
    for q, so in ((0, 36), (1, 37)):
        o = O[q]
        A(f"v_rcp_f32 v{vT0}, v{o+12}")
        A(f"v_cndmask_b32 v{o+8}, v{o+10}, v{o+8}, vcc"); A(f"v_cndmask_b32 v{o+9}, v{o+11}, v{o+9}, vcc")
        for i in range(10): A(f"v_mul_f32 v{o+i}, v{o+i}, v{vT0}")
        for i in range(5): A(f"v_cvt_pk_bf16_f32 v{o+i}, v{o+2*i}, v{o+2*i+1}")
        A(f"buffer_store_dwordx2 {vr(o,2)}, v{vAK}, s[20:23], s{so} offen")
        A(f"buffer_store_dwordx2 {vr(o+2,2)}, v{vAK}, s[20:23], s{so} offen offset:512")
        A(f"buffer_store_dword v{o+4}, v{vAR}, s[20:23], s{so} offen")

def gemm2(A, P):
    sW, sKS, sDH, sTT, sDG, sWO, sHO, sCNT = 24, 25, 26, 27, 28, 29, 30, 31
    SL = 18432; PAD = 4 * SL
    ACC = [64 + 16 * i for i in range(5)]
    WR = 16; HR = 144
    vD = [40 + i for i in range(5)]
    vAE, vAO, vA4, vH0, vH1, vT0, vT1, vT2, vRS = 8, 9, 10, 11, 12, 13, 14, 15, 45
    A(f"s_lshr_b32 s{sKS}, s3, 1"); A(f"s_and_b32 s{sDH}, s3, 1")
    A(f"s_and_b32 s33, s{sW}, 1"); A(f"s_lshl_b32 s{sTT}, s14, 1"); A(f"s_add_u32 s{sTT}, s{sTT}, s33")
    A(f"s_lshr_b32 s{sDG}, s{sW}, 1")
    A(f"s_lshl_b32 s33, s{sW}, 6"); A(f"s_mul_i32 s34, s{sDH}, 576")
    for i in range(5):
        A(f"v_add_u32 v{vT0}, s33, v0")
        if i: A(f"v_add_u32 v{vT0}, {i*256}, v{vT0}")
        A(f"v_mul_u32_u24 v{vT1}, 1821, v{vT0}"); A(f"v_lshrrev_b32 v{vT1}, 16, v{vT1}")
        A(f"v_mul_u32_u24 v{vT2}, 576, v{vT1}")
        A(f"v_lshl_add_u32 v{vD[i]}, v{vT0}, 4, v{vT2}"); A(f"v_add_u32 v{vD[i]}, s34, v{vD[i]}")
    A(f"s_lshl_b32 s38, s{sW}, 10"); A("s_mov_b32 s36, 16384")
    A(f"s_cmp_lt_u32 s{sW}, 2"); A("s_cselect_b64 vcc, -1, 0"); A(f"v_mov_b32 v{vT1}, 0x7ffffff0")
    A(f"v_cndmask_b32 v{vD[4]}, v{vT1}, v{vD[4]}, vcc")
    A(f"s_cselect_b32 s35, {SL}, 0"); A(f"s_cselect_b32 s36, s36, {PAD-2048}"); A("s_add_u32 s40, s36, s38")
    for i in range(1, 4): A(f"s_add_u32 s{40+i}, s{39+i}, s35")
    A(f"s_mul_i32 s{sWO}, s{sKS}, {1152*1152}")
    A(f"s_mul_i32 s{sHO}, s{sTT}, 288"); A(f"s_mul_i32 s33, s{sKS}, 72"); A(f"s_add_u32 s{sHO}, s{sHO}, s33")
    A(f"s_lshl_b32 s{sHO}, s{sHO}, 10"); A(f"s_add_u32 s{sHO}, s{sHO}, {WS_H}")
    A(f"s_lshl_b32 s33, s{sDG}, 10"); A(f"v_lshl_add_u32 v{vH0}, v0, 4, s33"); A(f"v_xor_b32 v{vH1}, 1024, v{vH0}")
    A("s_waitcnt lgkmcnt(0)")
    srd(A, 16, 4, 4608 * 1152)
    srd(A, 20, 12, WS_SIZE)
    def loads(slot):
        L = []
        for i in range(5):
            L.append(f"s_add_u32 m0, s38, {slot*SL + i*4096}" if i < 4 else f"s_mov_b32 m0, s{40+slot}")
            L.append("s_nop 0")
            L.append(f"buffer_load_dwordx4 v{vD[i]}, s[16:19], s{sWO} offen lds")
        L.append(f"buffer_load_dwordx4 {vr(HR+slot*8,4)}, v{vH0}, s[20:23], s{sHO} offen")
        L.append(f"buffer_load_dwordx4 {vr(HR+slot*8+4,4)}, v{vH1}, s[20:23], s{sHO} offen")
        L.append(f"s_add_u32 s{sWO}, s{sWO}, {32*1152}"); L.append(f"s_add_u32 s{sHO}, s{sHO}, 2048")
        return L
    A(f"v_lshlrev_b32 v{vT0}, 2, v2"); A(f"s_lshl_b32 s33, s{sTT}, 7"); A(f"s_add_u32 s33, s33, {WS_R}")
    A(f"buffer_load_dword v{vRS}, v{vT0}, s[20:23], s33 offen")
    for sl in range(3):
        for s in loads(sl): A(s)
    A(f"v_lshl_add_u32 v{vT0}, v3, 2, v4"); A(f"v_mul_u32_u24 v{vT0}, 576, v{vT0}")
    A(f"v_lshl_add_u32 v{vT0}, v6, 5, v{vT0}"); A(f"v_lshl_add_u32 v{vT0}, v5, 3, v{vT0}")
    A(f"s_mul_i32 s33, s{sDG}, 9216"); A("s_add_u32 s34, s33, 256"); A(f"v_add_u32 v{vA4}, s34, v{vT0}")
    A(f"s_mul_i32 s34, s{sDG}, 320"); A("s_add_u32 s35, s33, s34"); A(f"v_add_u32 v{vAE}, s35, v{vT0}")
    A("s_sub_u32 s35, 9216, s33"); A("s_add_u32 s35, s35, s34"); A(f"v_add_u32 v{vAO}, s35, v{vT0}")
    for a in ACC:
        for i in range(16): A(f"v_mov_b32 v{a+i}, 0")
    def frag(i):
        slot = (i // 9) % 4; j = i % 9
        if j < 4: return slot, vAE, j * 64, ACC[j], 0
        if j == 4: return slot, vA4, 0, ACC[4], 0
        return slot, vAO, (j - 5) * 64, ACC[j - 5], 1
    def wread(i):
        slot, a, co, _, _ = frag(i); r = WR + (i % 6) * 4
        return [f"ds_read_b64_tr_b16 {vr(r,2)}, v{a} offset:{slot*SL+co}", f"ds_read_b64_tr_b16 {vr(r+2,2)}, v{a} offset:{slot*SL+co+4608}"]
    A("s_waitcnt vmcnt(14)"); A("s_barrier")
    for i in range(4):
        for s in wread(i): A(s)
    A(f"s_mov_b32 s{sCNT}, 0")
    if P["gemm_prio"]: A(f"s_setprio {P['gemm_prio']}")
    A.label("K2_GLOOP")
    pend = []
    for i in range(36):
        slot, _, _, acc, hs = frag(i); j = i % 9
        A("s_waitcnt lgkmcnt(6)")
        A(f"v_mfma_f32_32x32x16_bf16 {vr(acc,16)}, {vr(WR+(i%6)*4,4)}, {vr(HR+slot*8+hs*4,4)}, {vr(acc,16)}")
        if j == 5:
            A("s_waitcnt vmcnt(7)"); A("s_barrier")
            pend = loads((slot + 3) % 4)
            if slot == 0: pend += [f"s_cmp_eq_u32 s{sCNT}, 8", "s_cselect_b32 s18, 0, s18", "s_cselect_b32 s22, 0, s22"]
        for s in wread(i + 4): A(s)
        if j >= 5:
            n = 6 if j < 8 else len(pend)
            for s in pend[:n]: A(s)
            pend = pend[n:]
    A(f"s_add_u32 s{sCNT}, s{sCNT}, 1"); A(f"s_cmp_lt_u32 s{sCNT}, 9"); A("s_cbranch_scc1 K2_GLOOP")
    A("s_waitcnt vmcnt(0) lgkmcnt(0)"); A("s_barrier")
    A(f"s_mov_b32 s22, {WS_SIZE}")
    A(f"s_and_b32 s33, s{sW}, 1"); A("s_lshl_b32 s33, s33, 12"); A(f"v_lshl_add_u32 v{vT0}, v0, 4, s33")
    A("s_nop 7")
    A(f"s_cmp_eq_u32 s{sDG}, 0"); A("s_cbranch_scc1 K2_GR0")
    for g in range(4): A(f"ds_write_b128 v{vT0}, {vr(ACC[4]+4*g,4)} offset:{g*1024}")
    A("s_waitcnt lgkmcnt(0)")
    A.label("K2_GR0")
    A("s_barrier")
    A(f"s_lshl_b32 s33, s{sKS}, 6"); A(f"s_add_u32 s33, s33, s{sTT}"); A("s_mul_i32 s33, s33, 18")
    A(f"s_mul_i32 s34, s{sDH}, 9"); A("s_add_u32 s33, s33, s34"); A(f"s_mul_i32 s34, s{sDG}, 5"); A("s_add_u32 s33, s33, s34")
    A("s_lshl_b32 s33, s33, 11"); A(f"s_add_u32 s33, s33, {WS_P}")
    A(f"v_lshlrev_b32 v{vT1}, 4, v0")
    def out_tile(a):
        for i in range(16): A(f"v_mul_f32 v{a+i}, v{a+i}, v{vRS}")
        for i in range(8): A(f"v_cvt_pk_bf16_f32 v{a+i}, v{a+2*i}, v{a+2*i+1}")
        A(f"buffer_store_dwordx4 {vr(a,4)}, v{vT1}, s[20:23], s33 offen")
        A(f"buffer_store_dwordx4 {vr(a+4,4)}, v{vT1}, s[20:23], s33 offen offset:1024")
        A("s_add_u32 s33, s33, 2048")
    for g in range(4): A(f"ds_read_b128 {vr(HR+4*g,4)}, v{vT0} offset:{g*1024}")
    for tl in range(4): out_tile(ACC[tl])
    A(f"s_cmp_lg_u32 s{sDG}, 0"); A("s_cbranch_scc1 K2_GEND")
    A("s_waitcnt lgkmcnt(0)")
    for i in range(16): A(f"v_add_f32 v{ACC[4]+i}, v{ACC[4]+i}, v{HR+i}")
    out_tile(ACC[4])
    A.label("K2_GEND")
    A("s_endpgm")

def k3(A, P):
    A.raw(".p2align 8"); A.label("k3_kernel")
    A("s_cmp_ge_u32 s2, 288"); A("s_cbranch_scc1 K3_EXIT")
    A("s_load_dwordx2 s[4:5], s[0:1], 0")
    A("s_load_dwordx2 s[6:7], s[0:1], 16")
    A("s_load_dwordx2 s[8:9], s[0:1], 56")
    A("s_load_dwordx2 s[12:13], s[0:1], 72")
    OF = 64; ACC = 16; PR = 32; XR = 208; WR = 216
    sW, sTT, sDT, sDB = 24, 25, 26, 27
    A("v_lshrrev_b32 v1, 6, v0"); A("v_and_b32 v0, 63, v0"); A(f"v_readfirstlane_b32 s{sW}, v1")
    A("s_and_b32 s3, s2, 7"); A("s_lshr_b32 s14, s2, 3")
    A("s_mul_i32 s15, s14, 57"); A("s_lshr_b32 s15, s15, 9")
    A("s_mul_i32 s32, s15, 9"); A(f"s_sub_u32 s{sDB}, s14, s32")
    A("s_lshl_b32 s3, s3, 2"); A("s_add_u32 s3, s3, s15")
    A(f"s_and_b32 s32, s{sW}, 1"); A(f"s_lshl_b32 s{sTT}, s3, 1"); A(f"s_add_u32 s{sTT}, s{sTT}, s32")
    A(f"s_lshr_b32 s33, s{sW}, 1"); A(f"s_lshl_b32 s{sDT}, s{sDB}, 1"); A(f"s_add_u32 s{sDT}, s{sDT}, s33")
    A("v_lshrrev_b32 v4, 3, v0"); A(f"s_lshl_b32 s32, s{sW}, 3"); A("v_add_u32 v4, s32, v4"); A("v_mul_u32_u24 v4, 1152, v4")
    A("v_bfe_u32 v6, v0, 4, 1"); A("v_lshlrev_b32 v6, 2, v6"); A("v_and_b32 v7, 7, v0"); A("v_xor_b32 v7, v7, v6")
    A("v_lshl_add_u32 v4, v7, 4, v4")
    A("v_lshlrev_b32 v5, 4, v0")
    A("v_and_b32 v2, 31, v0"); A("v_lshrrev_b32 v3, 5, v0")
    A("v_mul_u32_u24 v8, 1152, v2"); A("v_lshl_add_u32 v8, v3, 3, v8")
    A(f"s_lshl_b32 s38, s{sW}, 10"); A(f"s_lshl_b32 s39, s{sDB}, 7")
    A(f"s_mul_i32 s40, s{sTT}, 36864"); A(f"s_add_u32 s41, s40, {WS_O}")
    A(f"s_lshl_b32 s32, s{sDT}, 6"); A("s_add_u32 s40, s40, s32")
    A(f"s_mul_i32 s42, s{sTT}, 18"); A(f"s_add_u32 s42, s42, s{sDT}"); A("s_lshl_b32 s42, s42, 11"); A(f"s_add_u32 s42, s42, {WS_P}")
    A("s_waitcnt lgkmcnt(0)")
    srd(A, 16, 6, 576 * 1152); srd(A, 20, 12, WS_SIZE); srd(A, 44, 4, 2048 * 1152); srd(A, 48, 8, 2048 * 1152)
    for s in range(4):
        A(f"buffer_load_dwordx4 {vr(PR+8*s,4)}, v5, s[20:23], s42 offen")
        A(f"buffer_load_dwordx4 {vr(PR+8*s+4,4)}, v5, s[20:23], s42 offen offset:1024")
        if s < 3: A(f"s_add_u32 s42, s42, {64*18*2048}")
    for j in range(4): A(f"buffer_load_dwordx2 {vr(XR+2*j,2)}, v8, s[44:47], s40 offen offset:{16*j}")
    def third(c):
        for i in range(6 * c, 6 * c + 6):
            A(f"s_add_u32 m0, s38, {i*4096}"); A("s_nop 0")
            A("buffer_load_dwordx4 v4, s[16:19], s39 offen lds"); A(f"s_add_u32 s39, s39, {32*1152}")
        for ks in range(12 * c, 12 * c + 12):
            A(f"buffer_load_dwordx4 {vr(OF+4*ks,4)}, v5, s[20:23], s41 offen offset:{(ks%4)*1024}")
            if ks % 4 == 3: A("s_add_u32 s41, s41, 4096")
    third(0); third(1)
    A("v_bfe_u32 v9, v0, 2, 2"); A("v_lshl_add_u32 v9, v3, 3, v9"); A("v_lshlrev_b32 v9, 7, v9")
    A("v_and_b32 v10, 3, v0"); A("v_lshl_add_u32 v9, v10, 3, v9")
    A("v_bfe_u32 v10, v0, 4, 1"); A("v_lshl_add_u32 v9, v10, 5, v9")
    A("v_bfe_u32 v10, v0, 3, 1"); A("v_xor_b32 v10, s33, v10"); A("v_lshl_add_u32 v9, v10, 6, v9")
    A("v_add_u32 v11, 36864, v9")
    A("s_waitcnt vmcnt(36)")
    third(2)
    for i in range(8):
        A(f"v_lshlrev_b32 v{ACC+2*i}, 16, v{XR+i}"); A(f"v_and_b32 v{ACC+2*i+1}, 0xffff0000, v{XR+i}")
    for s in range(4):
        for i in range(8):
            A(f"v_lshlrev_b32 v12, 16, v{PR+8*s+i}"); A(f"v_and_b32 v13, 0xffff0000, v{PR+8*s+i}")
            A(f"v_add_f32 v{ACC+2*i}, v{ACC+2*i}, v12"); A(f"v_add_f32 v{ACC+2*i+1}, v{ACC+2*i+1}, v13")
    for c in range(3):
        A(f"s_waitcnt vmcnt({18*(2-c)})"); A("s_barrier")
        def rd(ks):
            r = WR + (ks % 6) * 4; a = 9 if ks < 18 else 11; off = (ks % 18) * 2048
            A(f"ds_read_b64_tr_b16 {vr(r,2)}, v{a} offset:{off}"); A(f"ds_read_b64_tr_b16 {vr(r+2,2)}, v{a} offset:{off+512}")
        for ks in range(12 * c, 12 * c + 4): rd(ks)
        for ks in range(12 * c, 12 * c + 12):
            left = min(3, 12 * c + 11 - ks)
            A(f"s_waitcnt lgkmcnt({2*left})")
            A(f"v_mfma_f32_32x32x16_bf16 {vr(ACC,16)}, {vr(WR+(ks%6)*4,4)}, {vr(OF+4*ks,4)}, {vr(ACC,16)}")
            if ks + 4 < 12 * c + 12: rd(ks + 4)
    A("s_nop 7"); A("s_nop 7")
    for i in range(8): A(f"v_cvt_pk_bf16_f32 v{ACC+i}, v{ACC+2*i}, v{ACC+2*i+1}")
    for j in range(4): A(f"buffer_store_dwordx2 {vr(ACC+2*j,2)}, v8, s[48:51], s40 offen offset:{16*j}")
    A.label("K3_EXIT")
    A("s_endpgm")

DEFAULTS = dict(ncg=4, rho_c=2, rho_r=1, attn_first=1, attn_prio=0, gemm_prio=0, bias=64)

def generate(**kw):
    P = dict(DEFAULTS); P.update(kw)
    A = Asm()
    hdr = open("cdna_kernels/" + NAME + ".s.ref").read().splitlines()
    for l in hdr:
        if l.startswith(";") and "@launch" not in l and "Override launch" not in l and "grid=ceil" not in l: A.raw(l)
    A.raw("; @launch kernel=k1_kernel grid=(256,1,1) block=(512,1,1) lds=147456")
    A.raw("; @launch kernel=k2_kernel grid=(512,1,1) block=(256,1,1) lds=75776")
    A.raw("; @launch kernel=k3_kernel grid=(288,1,1) block=(256,1,1) lds=73728")
    A.raw('.amdgcn_target "amdgcn-amd-amdhsa--gfx950"')
    A.raw(".text")
    for n in ("k1_kernel", "k2_kernel", "k3_kernel"):
        A.raw(f".globl {n}"); A.raw(f".type {n},@function")
    k1(A, P); k2(A, P); k3(A, P)
    A.raw('.section .rodata,"a"')
    for n, nv in (("k1_kernel", 256), ("k2_kernel", 176), ("k3_kernel", 240)):
        A.raw(".p2align 6"); descriptor(A, n, nv)
    return A.text()

if __name__ == "__main__":
    kw = {}
    out = "cdna_kernels/" + NAME + ".s"
    for a in sys.argv[1:]:
        k, v = a.split("=")
        if k == "out": out = v
        else: kw[k] = int(v)
    txt = generate(**kw)
    open(out, "w").write(txt)
    import hazard
    print("hazards:", hazard.check(txt), " lines:", txt.count("\n"))
```
